```python
import torch

def _softmax(x, axis=-1):
    return torch.softmax(x, dim=axis)
def _gelu(x):
    return torch.nn.functional.gelu(x, approximate="tanh")
def _silu(x):
    return torch.nn.functional.silu(x)
def _sigmoid(x):
    return torch.sigmoid(x)
def _layernorm(x, axis=-1, eps=1e-5):
    m = x.mean(dim=axis, keepdim=True)
    v = x.var(dim=axis, keepdim=True, unbiased=False)
    return (x - m) / torch.sqrt(v + eps)
def _scatter_add(tgt, idx, src, axis=0):
    return tgt.clone().index_add_(axis, idx, src)
def _segment_sum(src, seg, n):
    out = torch.zeros((n,) + src.shape[1:], dtype=src.dtype)
    return out.index_add_(0, seg, src)
def _pad(x, pw):
    flat = tuple(v for pair in reversed(pw) for v in pair)
    return torch.nn.functional.pad(x, flat)

kernel_name = 'gated_mix__mha_block__spectral_fnet__prompt'

def setup_inputs():

    _w = (lambda a: (lambda t: t.to(torch.bfloat16) if t.is_floating_point() else t)(torch.as_tensor(a)))
    def _A_setup():
        B, S, D, H = 1, 2048, 1024, 32
        return {
            "x": _w((lambda *s: torch.randn(*s, dtype=torch.bfloat16) * 0.05)(B, S, D)),
            "wqkv": _w((lambda *s: torch.randn(*s, dtype=torch.bfloat16) * 1.6)(D, 3 * D)),
            "wo": _w((lambda *s: torch.randn(*s, dtype=torch.bfloat16) * 0.2)(D, D)),
        }
    _A_in = _A_setup()

    def _B_setup():
        B, S, D = 1, 2048, 1024
        ns = torch.arange(S)[:, None] * torch.arange(S)[None, :]
        nd = torch.arange(D)[:, None] * torch.arange(D)[None, :]
        Ws_re = torch.cos(-2.0 * torch.pi * ns / S).to(float)
        Ws_im = torch.sin(-2.0 * torch.pi * ns / S).to(float)
        Wd_re = torch.cos(-2.0 * torch.pi * nd / D).to(float)
        Wd_im = torch.sin(-2.0 * torch.pi * nd / D).to(float)
        return {
            "x": _w((lambda *s: torch.randn(*s, dtype=torch.bfloat16) * 0.05)(B, S, D)),
            "dft_seq_re": _w(Ws_re),
            "dft_seq_im": _w(Ws_im),
            "dft_hid_re": _w(Wd_re),
            "dft_hid_im": _w(Wd_im),
        }
    _B_in = _B_setup()

    return {
        "A_x": _A_in["x"],
        "A_wqkv": _A_in["wqkv"],
        "A_wo": _A_in["wo"],
        "B_x": _B_in["x"],
        "B_dft_seq_re": _B_in["dft_seq_re"],
        "B_dft_seq_im": _B_in["dft_seq_im"],
        "B_dft_hid_re": _B_in["dft_hid_re"],
        "B_dft_hid_im": _B_in["dft_hid_im"],
        "gate_w": _w((lambda *s: torch.randn(*s, dtype=torch.bfloat16) * 0.05)(1024) * 16.0),
    }

def reference(A_x, A_wqkv, A_wo, B_x, B_dft_seq_re, B_dft_seq_im, B_dft_hid_re, B_dft_hid_im, gate_w):
    def _A_ref(x, wqkv, wo):
        B, S, D = x.shape
        H = 32
        Dh = D // H
        qkv = (lambda x, *d: x.permute(*d))((x @ wqkv).reshape(B, S, 3, H, Dh), 2, 0, 3, 1, 4)
        q, k, v = qkv[0], qkv[1], qkv[2]
        scores = torch.einsum("bhqd,bhkd->bhqk", q, k) * (Dh ** -0.5)
        p = _softmax(scores, axis=-1)
        o = torch.einsum("bhqk,bhkd->bhqd", p, v)
        return (lambda x, *d: x.permute(*d))(o, 0, 2, 1, 3).reshape(B, S, D) @ wo

    def _B_ref(x, dft_seq_re, dft_seq_im, dft_hid_re, dft_hid_im):
        a = torch.einsum("bsd,ed->bse", x, dft_hid_re)
        b = torch.einsum("bsd,ed->bse", x, dft_hid_im)
        y = torch.einsum("ts,bse->bte", dft_seq_re, a) - torch.einsum("ts,bse->bte", dft_seq_im, b)
        return y

    x = A_x
    g = _sigmoid((x * gate_w).sum(-1, keepdims=True))
    a = _A_ref(x, A_wqkv, A_wo)
    b = _B_ref(x, B_dft_seq_re, B_dft_seq_im, B_dft_hid_re, B_dft_hid_im)
    return g * a + (1 - g) * b
```

```python
import re

def vr(kind, a, n=1):
    return f'{kind}{a}' if n == 1 else f'{kind}[{a}:{a+n-1}]'
def v(a, n=1): return vr('v', a, n)
def acc(a, n=1): return vr('a', a, n)
def s(a, n=1): return vr('s', a, n)

REG = re.compile(r'(?<![\w.])([vas])(?:(\d+)|\[(\d+):(\d+)\])(?![\w])')
def regs(op):
    out = set()
    for k, n, lo, hi in REG.findall(op):
        if n: out.add((k, int(n)))
        else: out.update((k, i) for i in range(int(lo), int(hi) + 1))
    if re.search(r'\bvcc\b', op): out.add(('s', 'vcc'))
    if re.search(r'\bm0\b', op): out.add(('s', 'm0'))
    if re.search(r'\bexec\b', op): out.add(('s', 'exec'))
    return out

TRANS = ('v_exp_', 'v_log_', 'v_rcp_', 'v_rsq_', 'v_sqrt_', 'v_sin_', 'v_cos_')
class Ins:
    def __init__(self, text):
        self.text = text.strip()
        t = self.text.split(';')[0].strip()
        self.op = t.split()[0]
        rest = t[len(self.op):].strip()
        ops = [o.strip() for o in re.split(r',(?![^\[]*\])', rest)] if rest else []
        self.ops = ops
        op = self.op
        self.mfma = op.startswith('v_mfma') or op.startswith('v_smfmac')
        self.valu = op.startswith('v_') and not self.mfma
        self.trans = op.startswith(TRANS)
        self.dl = op.startswith('v_dot')
        self.vmem = op.startswith(('buffer_', 'global_'))
        self.ds = op.startswith('ds_')
        self.salu = op.startswith('s_')
        self.dpp = 'row_' in t or 'quad_perm' in t or 'wave_' in t
        self.states = int(ops[0]) + 1 if op == 's_nop' else 1
        self.w, self.r = set(), set()
        self.ra, self.rc = set(), set()
        self.store_data = set()
        R = [regs(o) for o in ops]
        if self.mfma:
            self.passes = 8 if '32x32' in op else 4
            self.w = R[0]
            if op.startswith('v_smfmac'):
                self.ra = R[1] | R[2] | R[3]; self.rc = R[0]
            else:
                self.ra = R[1] | R[2]; self.rc = R[3]
            self.r = self.ra | self.rc
        elif self.valu:
            self.w = set(R[0]); self.r = set().union(*R[1:]) if len(R) > 1 else set()
            if op.startswith(('v_fmac', 'v_dot2c', 'v_writelane')) or self.dpp: self.r |= R[0]
            if op.startswith(('v_swap', 'v_permlane')): self.w |= R[1]; self.r |= R[0]
            if '_co_' in op: self.w |= R[1]
            if op.startswith('v_cmpx'): self.w.add(('s', 'exec'))
        elif self.vmem:
            allr = set().union(*R) if R else set()
            if ' lds' in t:
                self.r = allr | {('s', 'm0')}; self.ldsdma = True
            elif 'load' in op:
                self.w = R[0]; self.r = set().union(*R[1:])
            elif 'store' in op or 'atomic' in op:
                self.r = allr
                data = R[0] if op.startswith('buffer') else R[1]
                if 'x4' in op or 'x3' in op: self.store_data = data
                if 'atomic' in op and 'sc0' in t: self.w = R[0]
        elif self.ds:
            if 'read' in op or 'bpermute' in op or 'swizzle' in op:
                self.w = R[0]; self.r = set().union(*R[1:])
            else:
                self.r = set().union(*R)
        elif self.salu and R:
            if op.startswith(('s_cmp', 's_cbranch', 's_branch', 's_waitcnt', 's_nop', 's_setprio', 's_sleep')):
                self.r = set().union(*R)
            else:
                self.w = set(R[0]); self.r = set().union(*R[1:]) if len(R) > 1 else set()
                if 'saveexec' in op: self.w.add(('s', 'exec'))

def need(p, c):
    n = 0
    vw = {x for x in p.w if x[0] != 's'}
    sw = {x for x in p.w if x[0] == 's'}
    if p.valu:
        if c.mfma and vw & c.r: n = max(n, 2)
        if p.trans and c.valu and not c.trans and vw & c.r: n = max(n, 1)
        if c.op.startswith('v_permlane') and vw & c.r: n = max(n, 2)
        if c.dpp and vw & c.r: n = max(n, 2)
        if c.op.startswith(('v_readlane', 'v_readfirstlane')) and vw & c.r: n = max(n, 1)
        if c.vmem and sw & c.r: n = max(n, 5)
        if c.valu and sw & c.r: n = max(n, 4 if c.op.startswith(('v_readlane', 'v_writelane')) else 2)
        if ('s', 'exec') in sw:
            if c.mfma or c.op.startswith(('v_permlane', 'v_readlane', 'v_readfirstlane')): n = max(n, 4)
            if c.dpp: n = max(n, 5)
        if p.dl and (c.valu or c.mfma or c.vmem or c.ds) and vw & (c.r | c.w):
            if not (c.op == p.op and not (vw & (regs(c.ops[1]) | regs(c.ops[2])))): n = max(n, 3)
    if p.mfma:
        big = p.passes == 8
        if c.mfma:
            if p.w & c.ra: n = max(n, 12 if big else 8)
            if p.w & c.rc and not (p.w == c.rc and p.passes == c.passes): n = max(n, 10 if big else 6)
        elif (c.valu or c.vmem or c.ds) and p.w & (c.r | c.w): n = max(n, 12 if big else 8)
        if c.valu and p.rc & c.w: n = max(n, 7 if big else 3)
    if p.store_data and p.store_data & c.w: n = max(n, 2 if (c.valu or c.mfma) else 1)
    if p.salu and ('s', 'm0') in p.w and c.vmem and ('s', 'm0') in c.r: n = max(n, 1)
    return n

def check(text, verbose=True):
    lines = []
    labels = {}
    for ln in text.split('\n'):
        t = ln.split(';')[0].strip()
        if not t or t.startswith('.'): continue
        if t.endswith(':'):
            labels[t[:-1]] = len(lines); continue
        lines.append(Ins(t))
    def succ(i):
        x = lines[i]
        if x.op == 's_endpgm': return []
        if x.op == 's_branch': return [labels[x.ops[0]]]
        if x.op.startswith('s_cbranch'): return [labels[x.ops[0]], i + 1]
        return [i + 1]
    bad = []
    for i, p in enumerate(lines):
        if not (p.valu or p.mfma or p.store_data or ('s', 'm0') in p.w): continue
        stack = [(j, 0) for j in succ(i)]
        seen = {}
        while stack:
            j, d = stack.pop()
            if j >= len(lines) or d >= 13 or seen.get(j, 99) <= d: continue
            seen[j] = d
            c = lines[j]
            nd = need(p, c)
            if nd > d: bad.append((nd, d, p.text, c.text))
            for k in succ(j): stack.append((k, d + c.states))
    if verbose:
        for b in bad: print('HAZARD need %d have %d: %s  ->  %s' % b)
    return bad

class Asm:
    def __init__(self): self.L = []
    def __call__(self, t):
        for ln in t.split('\n'):
            ln = ln.strip()
            if not ln: continue
            self.L.append(ln if (ln.endswith(':') or ln.startswith(('.', ';'))) else '    ' + ln)
    def text(self): return '\n'.join(self.L) + '\n'

def weave(main, misc, start=0, per=1):
    out = []; k = 0
    for i, x in enumerate(main):
        out.append(x)
        if i >= start:
            for _ in range(per):
                if k < len(misc):
                    if misc[k]: out.append(misc[k])
                    k += 1
    assert k >= len(misc), (k, len(misc))
    return out
```

```python
import sys, math, struct
from asmlib import *

NAME = 'gated_mix__mha_block__spectral_fnet__prompt'
MB = 1 << 20
KV_OFF, Q_OFF, O_OFF, U_OFF, G_OFF, F_OFF = 0, 8*MB, 12*MB, 16*MB, 24*MB, 25*MB
WS_BYTES = 32*MB
SX, SW, SWS, SWO, SRE, SIM, SGW, SOUT, SDBG, SCODE = 4, 8, 12, 16, 20, 24, 28, 32, 36, 40
sWV, sI, sJ, sXC, sR = 44, 45, 46, 47, 48
def f32(x): return '0x%08x' % struct.unpack('<I', struct.pack('<f', x))[0]
QSCALE = (32 ** -0.5) * math.log2(math.e)

class VM:
    def __init__(self): self.q = []
    def issue(self, tag): self.q.append(tag)
    def wait(self, tag):
        idx = max(i for i, t in enumerate(self.q) if t == tag)
        n = len(self.q) - 1 - idx
        self.q = self.q[idx + 1:]
        assert n <= 63, n
        return n

class Cfg:
    NS = 3
    rot_a = 2
    rot_b = 4
    sc = ''
    stamps = False

def srd(e, base, slot, nbytes):
    e(f's_load_dwordx2 {s(base,2)}, s[0:1], {slot*8}')
    e(f's_mov_b32 s{base+2}, {nbytes}')
    e(f's_mov_b32 s{base+3}, 0x00020000')

def common_prologue(e, tag, srds, code_bytes):
    e(f's_cmp_ge_u32 s2, 256\ns_cbranch_scc1 L_exit_{tag}')
    table = {SX: (0, 4*MB), SW: (1, 6*MB), SWO: (2, 2*MB), SRE: (4, 8*MB), SIM: (5, 8*MB), SGW: (8, 2048),
             SOUT: (9, 4*MB), SDBG: (10, 256), SWS: (11, WS_BYTES)}
    for b in srds: srd(e, b, *table[b])
    e(f'''s_getpc_b64 {s(SCODE,2)}
    s_mov_b32 s{SCODE+2}, {code_bytes}
    s_mov_b32 s{SCODE+3}, 0x00020000
    v_lshlrev_b32 v2, 7, v0
    v_lshrrev_b32 v1, 6, v0
    v_and_b32 v0, 63, v0
    buffer_load_dword v3, v2, {s(SCODE,4)}, 0 offen
    v_readfirstlane_b32 s{sWV}, v1
    s_and_b32 s{sXC}, s2, 7
    s_lshr_b32 s{sR}, s2, 3
    s_and_b32 s{sI}, s{sXC}, 1
    s_lshl_b32 s{sI}, s{sI}, 3
    s_and_b32 s50, s{sR}, 7
    s_add_u32 s{sI}, s{sI}, s50
    s_lshr_b32 s{sJ}, s{sXC}, 1
    s_lshl_b32 s{sJ}, s{sJ}, 2
    s_lshr_b32 s51, s{sR}, 3
    s_add_u32 s{sJ}, s{sJ}, s51''')

def stamp(e, cfg, k):
    if cfg.stamps:
        e(f's_memrealtime {s(80+2*k,2)}')

def stamp_store(e, cfg, kern, n):
    if not cfg.stamps: return
    e(f's_waitcnt lgkmcnt(0)\ns_lshl_b32 s50, s2, 2\ns_add_u32 s50, s50, s{sWV}\ns_lshl_b32 s50, s50, 5\ns_add_u32 s50, s50, {28*MB + kern*65536}')
    e('v_mov_b32 v1, 0')
    for k in range(n):
        e(f'v_mov_b32 v2, s{80+2*k}\nbuffer_store_dword v2, v1, {s(SWS,4)}, s50 offen offset:{4*k}')

STG = 40960
vDMA, vRD, vF, vACC, vTW = 8, 18, 36, 116, 212
aWC, aW32 = 0, 8
vL16, vGW = 4, 244

def phase1(e, cfg, vm):
    NS = cfg.NS
    def buf(k): return (((k + 1) % 3) if NS == 3 else (k % NS)) * STG
    XI = 2*STG if NS == 3 else 0
    ZI = 0 if NS == 3 else 2*STG
    sK, sM0, sKX, sKW, sS2, sJQ = 52, 53, 54, 55, 56, 57
    e(f'''s_mul_i32 s{sK}, s50, {cfg.rot_a}
    s_mul_i32 s58, s51, {cfg.rot_b}
    s_add_u32 s{sK}, s{sK}, s58
    s_and_b32 s{sK}, s{sK}, 15
    s_mov_b32 s{sJQ}, s51
    s_lshr_b32 s{sS2}, s{sXC}, 1
    s_lshl_b32 s{sS2}, s{sS2}, 4
    s_add_u32 s{sS2}, s{sS2}, s{sI}
    s_mul_i32 s{sM0}, s{sWV}, 10240
    v_lshlrev_b32 v{vL16}, 4, v0
    v_lshrrev_b32 v1, 3, v0
    v_and_b32 v2, 7, v0
    v_lshrrev_b32 v5, 4, v0''')
    e(f'''s_lshr_b32 s58, s{sWV}, 1
    s_lshl_b32 s58, s58, 4
    s_add_u32 s58, s58, s{sI}
    s_and_b32 s59, s{sWV}, 1
    s_lshl_b32 s59, s59, 10
    s_add_u32 s58, s58, s59
    s_lshl_b32 s58, s58, 11
    v_xor_b32 v6, v2, v5
    v_lshlrev_b32 v6, 4, v6
    v_lshl_add_u32 v6, v1, 16, v6
    v_add_u32 v6, s58, v6
    v_xor_b32 v7, 64, v6''')
    for n in range(4):
        e(f'v_add_u32 v{vDMA+n}, {n*8*32*2048 - n*1024}, v{6 + (n & 1)}')
    e(f'''s_mul_i32 s58, s{sWV}, {16*6144}
    s_lshl_b32 s59, s{sJ}, 7
    s_add_u32 s58, s58, s59
    v_and_b32 v6, 1, v5
    v_lshlrev_b32 v6, 1, v6
    v_xor_b32 v6, v2, v6
    v_lshlrev_b32 v6, 4, v6
    v_mul_u32_u24 v7, 6144, v1
    v_add3_u32 v6, v6, v7, s58
    v_xor_b32 v7, 64, v6''')
    for sg in range(3):
        for u in range(2):
            n = 2*sg + u
            e(f'v_add_u32 v{vDMA+4+n}, {sg*2048 + u*8*6144 - (n & 3)*1024}, v{6+u}')
    def dma_ops(k):
        ops = [f's_lshl_b32 s{sKX}, s{sK}, 7', f's_mul_i32 s{sKW}, s{sK}, {64*6144}']
        for n in range(10):
            if n % 4 == 0: ops.append(f's_add_u32 m0, s{sM0}, {buf(k) + n*1024}')
            if n == 0: ops.append(f's_add_u32 s{sK}, s{sK}, 1')
            if n == 4: ops.append(f's_and_b32 s{sK}, s{sK}, 15')
            if n == 8: ops.append('s_nop 0')
            sd, so = (SX, sKX) if n < 4 else (SW, sKW)
            ops.append(('dma', k, f'buffer_load_dwordx4 v{vDMA+n}, {s(sd,4)}, s{so} offen offset:{(n & 3)*1024} lds'))
        return ops
    def emit(ops):
        for o in ops:
            if isinstance(o, tuple):
                if o[0] == 'dma': vm.issue(o[1]); e(o[2])
                elif o[0] == 'wait': e(f's_waitcnt vmcnt({vm.wait(o[1])}) lgkmcnt(0)')
            else: e(o)
    e('s_waitcnt lgkmcnt(0)')
    for k in range(NS): emit(dma_ops(k))
    for n in range(2):
        vm.issue('gw'); e(f'buffer_load_dwordx4 {v(vGW+4*n,4)}, v{vL16}, {s(SGW,4)}, 0 offen offset:{n*1024}')
    e(f'''s_and_b32 s58, s{sWV}, 1
    s_mul_i32 s58, s58, 20480
    v_and_b32 v6, 15, v0
    v_bfe_u32 v7, v0, 1, 3
    v_xor_b32 v7, v5, v7
    v_lshlrev_b32 v7, 4, v7
    v_lshl_add_u32 v7, v6, 7, v7
    v_add_u32 v{vRD}, s58, v7
    v_xor_b32 v{vRD+1}, 64, v{vRD}
    s_lshr_b32 s58, s{sWV}, 1
    s_lshl_b32 s58, s58, 1
    v_bfe_u32 v6, v0, 3, 2
    v_xor_b32 v6, s58, v6
    v_lshlrev_b32 v6, 5, v6
    v_and_b32 v7, 3, v0
    v_lshl_add_u32 v6, v7, 3, v6
    v_bfe_u32 v7, v0, 2, 2
    v_lshl_add_u32 v6, v7, 7, v6
    v_bfe_u32 v7, v0, 4, 1
    v_lshl_add_u32 v6, v7, 10, v6
    v_lshrrev_b32 v7, 5, v0
    v_mul_u32_u24 v7, 10240, v7
    v_add_u32 v6, v6, v7
    v_add_u32 v{vRD+2}, 4096, v6
    v_xor_b32 v{vRD+3}, 32, v{vRD+2}''')
    for b in range(1, NS):
        for n in range(4): e(f'v_add_u32 v{vRD+4*b+n}, {b*STG}, v{vRD+n}')
    fft_consts(e, sJQ)
    def reads(k, kk):
        b = vRD + 4*(buf(k)//STG); F = vF + 40*kk
        ops = [f'ds_read_b128 {v(F+4*mt,4)}, v{b+kk} offset:{(mt >> 1)*10240 + (mt & 1)*2048}' for mt in range(4)]
        for f in range(6):
            for u in range(2):
                ops.append(f'ds_read_b64_tr_b16 {v(F+16+4*f+2*u,2)}, v{b+2+(f & 1)} offset:{kk*20480 + (f >> 1)*2048 + u*512}')
        return ops
    def mfmas(kk, first=False, order=range(6)):
        F = vF + 40*kk; ops = []
        for f in order:
            for mt in range(4):
                d = vACC + 16*f + 4*mt
                a, b = (F+16+4*f, F+4*mt) if f < 4 else (F+4*mt, F+16+4*f)
                ops.append(f'v_mfma_f32_16x16x32_bf16 {v(d,4)}, {v(a,4)}, {v(b,4)}, {"0" if first else v(d,4)}')
        return ops
    def merge(rd, other):
        slots = [[] for _ in range(24)]
        groups = []; cur = []
        for o in other:
            cur.append(o)
            if isinstance(o, tuple): groups.append(cur); cur = []
        if cur: groups.append(cur)
        pos = [3, 7, 11, 15, 19, 20, 21, 22, 22][:len(groups)] if rd else list(range(0, 2*len(groups), 2))
        free = [i for i in range(23) if i not in pos]
        for i, r_ in zip(free, rd): slots[i].append(r_)
        for p_, g_ in zip(pos, groups):
            pre = g_[:-1]
            for q_, o in enumerate(pre): slots[max(0, p_ - len(pre) + q_)].append(o)
            slots[p_].append(g_[-1])
        return slots
    def half(mf, slots, last):
        slots[23] += last
        for m_, sl in zip(mf, slots):
            e(m_); emit(sl)
    def f1_dma(rows):
        ops = []
        for r_ in rows:
            ops += [f's_add_u32 m0, s60, {r_*2080}', f's_add_u32 s62, s61, {r_*64*2048}']
            for h_ in range(2):
                ops.append(('dma', 'f1', f'buffer_load_dwordx4 v{vL16}, {s(SX,4)}, s62 offen offset:{h_*1024} lds'))
        return ops
    e(f'''s_mul_i32 s60, s{sWV}, {8*2080}
    s_add_u32 s60, s60, {XI}
    s_lshl_b32 s61, s{sWV}, 9
    s_add_u32 s61, s61, s{sS2}
    s_lshl_b32 s61, s61, 11''')
    stamp(e, cfg, 1)
    emit([('wait', 0), 's_barrier'])
    stamp(e, cfg, 2)
    emit(reads(0, 0)); e('s_waitcnt lgkmcnt(0)')
    half(mfmas(0, True), merge(reads(0, 1), []), [('wait', 1), 's_barrier'])
    for k in range(1, 16):
        nk = k - 1 + NS
        if nk < 16:
            d = dma_ops(nk)
            cut = [i for i, o in enumerate(d) if isinstance(o, tuple)][4] + 1
            dA, dB = d[:cut], d[cut:]
        elif k >= 14:
            r0 = 4*(k - 14)
            dA, dB = f1_dma([r0, r0+1]), f1_dma([r0+2, r0+3])
        else:
            dA, dB = [], []
        half(mfmas(1), merge(reads(k, 0), dA), ['s_waitcnt lgkmcnt(0)'])
        half(mfmas(0), merge(reads(k, 1), dB), [('wait', k+1), 's_barrier'] if k < 15 else ['s_waitcnt lgkmcnt(0)'])
    e(f'''s_lshl_b32 s58, s{sJ}, 1
    s_lshr_b32 s59, s{sWV}, 1
    s_add_u32 s58, s58, s59
    s_and_b32 s59, s{sWV}, 1
    s_lshl_b32 s63, s58, 18
    s_lshl_b32 s64, s59, 17
    s_add_u32 s63, s63, s64
    s_lshl_b32 s64, s{sI}, 13
    s_add_u32 s63, s63, s64
    s_add_u32 s65, s63, 4096
    s_lshl_b32 s66, s58, 17
    s_add_u32 s66, s66, s64
    s_lshl_b32 s64, s59, 12
    s_add_u32 s66, s66, s64
    s_add_u32 s66, s66, {Q_OFF}
    s_mov_b32 s67, {f32(QSCALE)}
    v_and_b32 v6, 15, v0
    v_lshlrev_b32 v6, 4, v6
    v_lshl_add_u32 v6, v5, 9, v6''')
    last = mfmas(1, order=[2, 3, 4, 5, 0, 1])
    T = vF
    def pack(dst, r0, r1):
        return [f'v_cvt_pk_bf16_f32 v{dst}, v{r0}, v{r0+1}', f'v_cvt_pk_bf16_f32 v{dst+1}, v{r0+2}, v{r0+3}',
                f'v_cvt_pk_bf16_f32 v{dst+2}, v{r1}, v{r1+1}', f'v_cvt_pk_bf16_f32 v{dst+3}, v{r1+2}, v{r1+3}']
    kops, vops, qops = [], [], []
    for mt in range(4):
        kops += pack(T+4*mt, vACC+32+4*mt, vACC+48+4*mt)
        kops.append(('dma', 'st', f'buffer_store_dwordx4 {v(T+4*mt,4)}, v6, {s(SWS,4)}, s{63+2*(mt >> 1)} offen offset:{(mt & 1)*256}{cfg.sc}'))
    for p_ in range(2):
        for nt in range(2):
            d = T + 16 + 4*(2*p_ + nt)
            vops += pack(d, vACC+64+16*nt+8*p_, vACC+64+16*nt+8*p_+4)
            vops.append(('dma', 'st', f'buffer_store_dwordx4 {v(d,4)}, v6, {s(SWS,4)}, s{63+2*p_} offen offset:{2048+nt*256}{cfg.sc}'))
    for mt in range(4):
        for r_ in range(4):
            qops += [f'v_mul_f32 v{vACC+4*mt+r_}, s67, v{vACC+4*mt+r_}', f'v_mul_f32 v{vACC+16+4*mt+r_}, s67, v{vACC+16+4*mt+r_}']
        d = vACC + 32 + 4*mt
        qops += pack(d, vACC+4*mt, vACC+16+4*mt)
        qops.append(('dma', 'st', f'buffer_store_dwordx4 {v(d,4)}, v6, {s(SWS,4)}, s66 offen offset:{(mt >> 1)*2048 + (mt & 1)*256}{cfg.sc}'))
    for i, m_ in enumerate(last):
        e(m_)
        if i >= 14: emit(kops[2*(i-14):2*(i-14)+2])
    emit(vops); emit(qops)
    stamp(e, cfg, 3)
    fft_body(e, cfg, vm, XI, ZI, sS2, sJQ)

def fft_consts(e, sJQ):
    T = vF
    e(f'''v_and_b32 v6, 3, v0
    v_bfe_u32 v7, v0, 3, 2
    v_lshl_add_u32 v6, v7, 2, v6
    v_bfe_u32 v7, v0, 2, 1
    v_lshl_add_u32 v252, v7, 4, v6
    v_cvt_f32_u32 v6, v252
    v_mul_f32 v6, {f32(1/1024)}, v6
    v_lshrrev_b32 v7, 5, v0
    v_lshlrev_b32 v7, 2, v7
    v_cvt_f32_u32 v7, v7
    v_mul_f32 v7, v6, v7''')
    for r_ in range(16):
        e(f'v_fmamk_f32 v{T+r_}, v6, {f32(8*(r_ >> 2) + (r_ & 3))}, v7')
    for r_ in range(16):
        e(f'v_cos_f32 v{vTW+r_}, v{T+r_}\nv_sin_f32 v{vTW+16+r_}, v{T+r_}')
        e(f'v_mul_f32 v{T+r_}, {f32(32)}, v{T+r_}\nv_fract_f32 v{T+r_}, v{T+r_}')
    for r_ in range(16):
        e(f'v_cos_f32 v{T+16+r_}, v{T+r_}\nv_sin_f32 v{T+32+r_}, v{T+r_}')
    for r_ in range(8):
        e(f'v_cvt_pk_bf16_f32 v{T+r_}, v{T+16+2*r_}, v{T+17+2*r_}')
        e(f'v_cvt_pk_bf16_f32 v{T+8+r_}, v{T+32+2*r_}, v{T+33+2*r_}')
        e(f'v_cvt_pk_bf16_f32 v{T+48+r_}, -v{T+32+2*r_}, -v{T+33+2*r_}')
    for r_ in range(8):
        e(f'v_accvgpr_write_b32 a{aW32+r_}, v{T+r_}\nv_accvgpr_write_b32 a{aW32+8+r_}, v{T+8+r_}\nv_accvgpr_write_b32 a{aW32+16+r_}, v{T+48+r_}')
    e(f'''s_lshl_b32 s58, s{sJQ}, 3
    v_and_b32 v6, 7, v0
    v_add_u32 v6, s58, v6
    v_and_b32 v7, 1, v0
    v_cvt_f32_u32 v7, v7
    v_mul_f32 v7, {f32(0.25)}, v7
    v_cmp_eq_u32 vcc, 1, v6
    v_lshrrev_b32 v6, 1, v6
    v_lshlrev_b32 v{T}, 2, v5
    v_cndmask_b32 v6, v6, 16, vcc
    v_cndmask_b32 v7, v7, 0, vcc
    v_cvt_f32_u32 v6, v6
    v_mul_f32 v6, {f32(1/32)}, v6
    v_cvt_f32_u32 v{T}, v{T}
    v_fma_f32 v7, v6, v{T}, v7''')
    for q_ in range(8):
        e(f'v_fmamk_f32 v{T+q_}, v6, {f32(16*(q_ >> 2) + (q_ & 3))}, v7\nv_fract_f32 v{T+q_}, v{T+q_}')
    for q_ in range(8): e(f'v_cos_f32 v{T+q_}, v{T+q_}')
    e('v_and_b32 v6, 8, v0\nv_cmp_eq_u32 vcc, 0, v6')
    for q_ in range(4): e(f'v_cvt_pk_bf16_f32 v{T+8+q_}, v{T+2*q_}, v{T+2*q_+1}')
    for q_ in range(4):
        e(f'v_cndmask_b32 v{T+q_}, 0, v{T+8+q_}, vcc\nv_cndmask_b32 v{T+4+q_}, v{T+8+q_}, 0, vcc')
    for q_ in range(8): e(f'v_accvgpr_write_b32 a{aWC+q_}, v{T+q_}')

def fft_body(e, cfg, vm, XI, ZI, sS2, sJQ):
    A = vF; D = vACC + 64
    e(f'''s_lshl_b32 s58, s{sWV}, 9
    s_add_u32 s59, s58, {XI}
    v_lshrrev_b32 v7, 2, v0
    v_mul_u32_u24 v7, 2080, v7
    v_and_b32 v8, 3, v0
    v_lshl_add_u32 v7, v8, 3, v7
    v_add_u32 v7, s59, v7
    s_add_u32 s59, s58, {ZI}
    v_mul_u32_u24 v9, 2056, v8
    v_bfe_u32 v10, v0, 2, 1
    v_mul_u32_u24 v10, {4*2048+64}, v10
    v_add3_u32 v9, v9, v10, s59
    v_bfe_u32 v10, v0, 3, 1
    v_lshl_add_u32 v9, v10, 5, v9
    v_lshl_add_u32 v9, v5, 3, v9
    s_and_b32 s58, s{sWV}, 1
    s_mul_i32 s58, s58, {2*2056}
    s_lshr_b32 s59, s{sWV}, 1
    s_mul_i32 s59, s59, {4*2048+64}
    s_add_u32 s58, s58, s59
    s_add_u32 s58, s58, {ZI}
    v_lshlrev_b32 v10, 3, v8
    v_bfe_u32 v11, v0, 2, 2
    v_lshl_add_u32 v10, v11, 6, v10
    v_bfe_u32 v11, v0, 4, 1
    v_lshl_add_u32 v10, v11, 5, v10
    v_lshrrev_b32 v11, 5, v0
    v_lshl_add_u32 v10, v11, 8, v10
    v_add_u32 v10, s58, v10
    s_lshl_b32 s58, s{sJQ}, 2
    s_add_u32 s58, s58, s{sWV}
    s_mul_i32 s59, s58, {2*2080}
    s_add_u32 s59, s59, {XI}
    v_add_u32 v12, s59, v{vL16}''')
    e(f's_waitcnt vmcnt({vm.wait("f1")})\ns_barrier')
    GX = vACC
    for r_ in range(2):
        for h_ in range(2):
            e(f'ds_read_b128 {v(GX+8*r_+4*h_,4)}, v12 offset:{r_*2080 + h_*1024}')
    rd = []
    for t in range(16):
        for u in range(2): rd.append(f'ds_read_b64_tr_b16 {v(A+4*t+2*u,2)}, v7 offset:{t*32 + u*16*2080}')
    for x in rd[:10]: e(x)
    e('s_waitcnt lgkmcnt(10)\nv_mov_b32 v13, 0\nv_mov_b32 v14, 0')
    for q_ in range(8):
        e(f'v_dot2_f32_bf16 v13, v{GX+q_}, v{vGW+q_}, v13\nv_dot2_f32_bf16 v14, v{GX+8+q_}, v{vGW+q_}, v14')
    for t in range(16):
        issued = min(32, 10 + 2*t)
        e(f's_waitcnt lgkmcnt({issued - 2*(t+1)})')
        d = D + 4*(t >> 1)
        e(f'v_mfma_f32_16x16x32_bf16 {v(d,4)}, {v(A+4*t,4)}, {acc(aWC+4*(t & 1),4)}, {v(d,4) if t & 1 else "0"}')
        for x in rd[10+2*t:12+2*t]: e(x)
    e('v_permlane32_swap_b32 v13, v14\ns_nop 1\nv_add_f32 v13, v13, v14')
    red = [f'v_add_f32_dpp v13, v13, v13 row_shr:{n} row_mask:0xf bank_mask:0xf bound_ctrl:1' for n in (1, 2, 4, 8)]
    red.append('v_add_f32_dpp v13, v13, v13 row_bcast:15 row_mask:0xa bank_mask:0xf')
    red += [f'v_mul_f32 v13, {f32(-math.log2(math.e))}, v13', 'v_exp_f32 v13, v13', 'v_add_f32 v13, 1.0, v13']
    for t in range(8):
        d = D + 4*t
        e(f'v_cvt_pk_bf16_f32 v{d}, v{d}, v{d+1}\nv_cvt_pk_bf16_f32 v{d+1}, v{d+2}, v{d+3}')
        e(red[t])
        e(f'ds_write_b64 v9, {v(d,2)} offset:{t*64}')
    e(f'''v_rcp_f32 v13, v13
    s_lshl_b32 s59, s58, 7
    s_add_u32 s59, s59, s{sS2}
    s_lshl_b32 s59, s59, 2
    s_add_u32 s59, s59, {G_OFF}
    v_lshlrev_b32 v14, 8, v11
    s_mov_b32 s62, 0x80000000
    s_mov_b32 s63, 0x80000000
    s_mov_b64 exec, s[62:63]''')
    vm.issue('g'); e(f'buffer_store_dword v13, v14, {s(SWS,4)}, s59 offen{cfg.sc}')
    e('s_mov_b64 exec, -1\ns_waitcnt lgkmcnt(0)\ns_barrier')
    Z = vF; AR, AI, B, XR, XI_ = vACC, vACC+16, vF+16, vACC+32, vACC+48
    for k in range(2):
        for pl in range(2):
            for u in range(2):
                e(f'ds_read_b64_tr_b16 {v(Z+8*pl+4*k+2*u,2)}, v10 offset:{k*1024 + u*512 + pl*2056}')
    e(f'''s_lshl_b32 s59, s{sS2}, 11
    s_add_u32 s59, s59, {U_OFF}
    s_lshl_b32 s62, s58, 18
    s_add_u32 s62, s62, s59
    s_add_u32 s63, s62, 131072
    s_sub_u32 s64, 32, s58
    s_cmp_eq_u32 s58, 0
    s_cselect_b32 s64, 16, s64
    s_lshl_b32 s64, s64, 18
    s_add_u32 s64, s64, s59
    s_add_u32 s65, s64, 131072
    v_lshl_add_u32 v7, v252, 1, v11
    v_lshlrev_b32 v8, 5, v7
    v_sub_u32 v9, {63*32}, v8
    v_add_u32 v7, 1, v7
    v_bfe_u32 v12, v7, 1, 2
    v_bfe_u32 v13, v7, 3, 2
    v_lshl_add_u32 v12, v13, 3, v12
    v_bfe_u32 v13, v7, 5, 1
    v_lshl_add_u32 v12, v13, 2, v12
    v_and_b32 v13, 1, v7
    v_lshl_add_u32 v12, v13, 5, v12
    v_lshlrev_b32 v12, 2, v12''')
    C_, S_, N_ = aW32, aW32+8, aW32+16
    def mf(d, a, b, first): return f'v_mfma_f32_32x32x16_bf16 {v(d,16)}, {v(a,4)}, {acc(b,4)}, {"0" if first else v(d,16)}'
    def cplx(dr, di, src, k):
        return [mf(dr, src+4*k, C_+4*k, k == 0), mf(di, src+8+4*k, C_+4*k, k == 0), mf(dr, src+8+4*k, S_+4*k, False), mf(di, src+4*k, N_+4*k, False)]
    e('s_waitcnt lgkmcnt(4)')
    for x in cplx(AR, AI, Z, 0): e(x)
    e('s_waitcnt lgkmcnt(0)')
    for x in cplx(AR, AI, Z, 1): e(x)
    e('s_nop 10')
    T = vF + 32
    def twid(k):
        ops = []
        for r_ in range(8*k, 8*k+8):
            t = T + 2*(r_ & 7)
            ops += [f'v_mul_f32 v{t}, v{AR+r_}, v{vTW+r_}', f'v_mul_f32 v{t+1}, v{AI+r_}, v{vTW+r_}']
        for r_ in range(8*k, 8*k+8):
            t = T + 2*(r_ & 7)
            ops += [f'v_fmac_f32 v{t}, v{AI+r_}, v{vTW+16+r_}', f'v_fma_f32 v{t+1}, -v{AR+r_}, v{vTW+16+r_}, v{t+1}']
        for q_ in range(4):
            ops += [f'v_cvt_pk_bf16_f32 v{B+4*k+q_}, v{T+4*q_}, v{T+4*q_+2}', f'v_cvt_pk_bf16_f32 v{B+8+4*k+q_}, v{T+4*q_+1}, v{T+4*q_+3}']
        return ops
    for x in twid(0): e(x)
    t1 = twid(1)
    e(t1[0]); e(t1[1])
    for x in weave(cplx(XR, XI_, B, 0), t1[2:], per=10): e(x)
    e('s_nop 1')
    for x in cplx(XR, XI_, B, 1): e(x)
    e('s_nop 10')
    e(f'ds_bpermute_b32 v13, v12, v{XR}')
    e(f'ds_bpermute_b32 v14, v12, v{XI_}')
    P = vF
    for pl, (src, neg) in enumerate(((XR, ''), (XI_, '-'))):
        for q_ in range(8): e(f'v_cvt_pk_bf16_f32 v{P+8*pl+q_}, {neg}v{src+2*q_}, {neg}v{src+2*q_+1}')
        for h_ in range(2):
            vm.issue('u'); e(f'buffer_store_dwordx4 {v(P+8*pl+4*h_,4)}, v8, {s(SWS,4)}, s{62+pl} offen offset:{16*h_}{cfg.sc}')
    e('s_waitcnt lgkmcnt(0)')
    for pl, src in enumerate((XR, XI_)):
        e(f'v_cvt_pk_bf16_f32 v{P+16+8*pl}, v{13+pl}, v{src+15}')
        for q_ in range(1, 8): e(f'v_cvt_pk_bf16_f32 v{P+16+8*pl+q_}, v{src+16-2*q_}, v{src+15-2*q_}')
        for h_ in range(2):
            vm.issue('u'); e(f'buffer_store_dwordx4 {v(P+16+8*pl+4*h_,4)}, v9, {s(SWS,4)}, s{64+pl} offen offset:{16*h_}{cfg.sc}')

vC, vS, vO, vLA, vONES, vIDX = 16, 80, 144, 208, 224, 228
aQ, aKV = 32, 64

def phase2(e, cfg, vm):
    sKVb, sOff, sCur, sCnt, sPass = 52, 53, 54, 55, 56
    vK, vV = 6, vL16
    e(f'''s_lshl_b32 s58, s{sJ}, 1
    s_lshr_b32 s59, s{sWV}, 1
    s_add_u32 s58, s58, s59
    s_and_b32 s59, s{sWV}, 1
    s_lshl_b32 s60, s58, 18
    s_lshl_b32 s61, s59, 17
    s_add_u32 s{sKVb}, s60, s61
    s_lshl_b32 s62, s{sI}, 13
    s_add_u32 s60, s60, s62
    s_lshl_b32 s63, s58, 17
    s_add_u32 s63, s63, s62
    s_add_u32 s63, s63, {Q_OFF}
    s_add_u32 s64, s63, 4096
    s_mov_b32 s{sPass}, 0
    v_lshlrev_b32 v{vL16}, 4, v0
    v_and_b32 v6, 35, v0
    v_bfe_u32 v7, v0, 3, 2
    v_lshl_add_u32 v6, v7, 2, v6
    v_bfe_u32 v7, v0, 2, 1
    v_lshl_add_u32 v6, v7, 4, v6
    v_lshlrev_b32 v6, 4, v6
    s_waitcnt lgkmcnt(0)''')
    def ld(b, n):
        return f'buffer_load_dwordx4 {acc(aKV+16*b+4*n,4)}, v{vK if n < 2 else vV}, {s(SWS,4)}, s{sCur} offen offset:{n*1024}{cfg.sc}'
    def adv():
        return [f's_add_u32 s{sCur}, s{sKVb}, s{sOff}', f's_add_u32 s{sOff}, s{sOff}, 4096', f's_and_b32 s{sOff}, s{sOff}, 0x1ffff']
    for n in range(2):
        e(f'buffer_load_dwordx4 {acc(aKV+48+4*n,4)}, v{vK}, {s(SWS,4)}, s60 offen offset:{n*1024}{cfg.sc}')
    for a in range(4):
        for n in range(2):
            e(f'buffer_load_dwordx4 {acc(aQ+8*a+4*n,4)}, v{vV}, {s(SWS,4)}, s{63+(a >> 1)} offen offset:{(a & 1)*2048 + n*1024}{cfg.sc}')
    e(f's_mov_b32 s{sOff}, s62')
    for b in range(3):
        for x in adv(): e(x)
        for n in range(4): e(ld(b, n))
    e(f'''v_mov_b32 v{vIDX}, 0xdddddddd
    v_and_b32 v8, 7, v0
    v_mov_b32 v9, 0x3f803f80
    v_cmp_eq_u32 vcc, 0, v8
    s_nop 1
    v_cndmask_b32 v{vONES}, 0, v9, vcc
    v_cndmask_b32 v{vONES+1}, 0, v9, vcc
    v_cmp_eq_u32 vcc, 4, v8
    s_nop 1
    v_cndmask_b32 v{vONES+2}, 0, v9, vcc
    v_cndmask_b32 v{vONES+3}, 0, v9, vcc''')
    zero = [f'v_mov_b32 v{r_}, 0' for r_ in list(range(vO, vO+64)) + list(range(vLA, vLA+16)) + list(range(vS+56, vS+64))]
    zero += [f'v_accvgpr_write_b32 a{aKV+60+r_}, 0' for r_ in range(4)]
    for x in zero: e(x)
    stamp(e, cfg, 1)
    e('s_waitcnt vmcnt(12)')
    stamp(e, cfg, 2)
    def qk(dst, kf, a, j, c):
        return f'v_mfma_f32_32x32x16_bf16 {v(dst,16)}, {acc(kf+4*j,4)}, {acc(aQ+8*a+4*j,4)}, {c}'
    for a in range(4):
        e(qk(vC+16*a, aKV+48, a, 0, '0')); e(qk(vC+16*a, aKV+48, a, 1, v(vC+16*a,16)))
    e('s_nop 5')
    for a in range(4):
        c = vC + 16*a
        e(f'v_max3_f32 v{8+a}, v{c}, v{c+1}, v{c+2}')
        for r_ in range(3, 15, 2): e(f'v_max3_f32 v{8+a}, v{8+a}, v{c+r_}, v{c+r_+1}')
        e(f'v_max_f32 v{8+a}, v{8+a}, v{c+15}')
    e('L_att_setmax:')
    for a in range(4): e(f'v_mov_b32 v{12+a}, v{8+a}')
    for a in range(4): e(f'v_permlane32_swap_b32 v{8+a}, v{12+a}')
    for a in range(4): e(f'v_max_f32 v{8+a}, v{8+a}, v{12+a}')
    for a in range(4):
        for r_ in range(16): e(f'v_sub_f32 v{vC+16*a+r_}, 0, v{8+a}')
    e(f's_mov_b32 s{sCnt}, 8\ns_waitcnt vmcnt(8)')
    e(qk(vS, aKV, 0, 0, v(vC,16))); e(qk(vS, aKV, 0, 1, v(vS,16)))
    e('s_nop 10')
    stamp(e, cfg, 3)
    e('.p2align 6\nL_att_loop:')
    for t in range(4):
        for a in range(4):
            pa, pt = (a - 1) & 3, (t if a else (t - 1) & 3)
            na, nt = (a + 1) & 3, (t if a < 3 else (t + 1) & 3)
            cur, prv, nxt = vS+16*a, vS+16*pa, vS+16*na
            E = [f'v_exp_f32 v{cur+r_}, v{cur+r_}' for r_ in range(16)]
            q0 = qk(nxt, aKV+16*nt, na, 0, v(vC+16*na,16)); q1 = qk(nxt, aKV+16*nt, na, 1, v(nxt,16))
            pvh = f'v_smfmac_f32_32x32x32_bf16 {v(vO+16*pa,16)}, {acc(aKV+16*pt+12,4)}, {v(prv+8,8)}, v{vIDX}'
            rsh = f'v_smfmac_f32_16x16x64_bf16 {v(vLA+4*pa,4)}, {v(vONES,4)}, {v(prv+8,8)}, v{vIDX}'
            pvl = f'v_smfmac_f32_32x32x32_bf16 {v(vO+16*a,16)}, {acc(aKV+16*t+8,4)}, {v(cur,8)}, v{vIDX}'
            rsl = f'v_smfmac_f32_16x16x64_bf16 {v(vLA+4*a,4)}, {v(vONES,4)}, {v(cur,8)}, v{vIDX}'
            m = [[] for _ in range(6)]
            m[5] = [ld((t + 3) & 3, a)]
            if a == 0:
                ad = adv(); m[0], m[1], m[2] = [ad[0]], [ad[1]], [ad[2]]
            if a == 2: m[4] = ['s_waitcnt vmcnt(6)']
            if t == 1 and a == 1: m[0] = [f's_sub_u32 s{sCnt}, s{sCnt}, 1']
            if t == 3 and a == 3: m[0] = [f's_cmp_lg_u32 s{sCnt}, 0']
            for x in [q0]+m[0]+E[0:3]+[q1]+m[1]+E[3:6]+[pvh]+m[2]+E[6:9]+[rsh]+m[3]+E[9:10]+[pvl]+m[4]+E[10:13]+[rsl]+m[5]+E[13:16]: e(x)
    e('s_cbranch_scc1 L_att_loop\ns_nop 0')
    e(f'v_smfmac_f32_32x32x32_bf16 {v(vO+48,16)}, {acc(aKV+60,4)}, {v(vS+56,8)}, v{vIDX}')
    e(f'v_smfmac_f32_16x16x64_bf16 {v(vLA+12,4)}, {v(vONES,4)}, {v(vS+56,8)}, v{vIDX}')
    stamp(e, cfg, 4)
    XB = cfg.xch
    e(f'''s_mul_i32 s60, s{sWV}, 8704
    s_xor_b32 s61, s{sWV}, 1
    s_mul_i32 s61, s61, 8704
    s_add_u32 s60, s60, {XB}
    s_add_u32 s61, s61, {XB}
    v_add_u32 v8, s60, v{vL16}
    v_add_u32 v9, s61, v{vL16}
    v_lshlrev_b32 v10, 3, v0
    v_add_u32 v11, s61, v10
    v_add_u32 v10, s60, v10
    s_cmp_eq_u32 s59, 0
    s_cbranch_scc1 L_att_kh0''')
    R = vS
    def send(a0):
        for q_ in range(8): e(f'ds_write_b128 v8, {v(vO+16*a0+4*q_,4)} offset:{q_*1024}')
        e(f'v_mov_b32 v12, v{vLA+4*a0}\nv_mov_b32 v13, v{vLA+4*a0+4}')
    def keep(a0):
        e(f'v_mov_b32 v14, v{vLA+4*a0}\nv_mov_b32 v15, v{vLA+4*a0+4}')
    send(0); keep(2)
    for r_ in range(32): e(f'v_mov_b32 v{vO+r_}, v{vO+32+r_}')
    e('s_branch L_att_join\nL_att_kh0:\ns_nop 1')
    send(2); keep(0)
    e('L_att_join:\nds_write_b64 v10, v[12:13] offset:8192\ns_waitcnt lgkmcnt(0)\ns_barrier')
    e('ds_read_b64 v[12:13], v11 offset:8192')
    for q_ in range(8): e(f'ds_read_b128 {v(R+4*q_,4)}, v9 offset:{q_*1024}')
    e(f'''s_lshl_b32 s60, s{sI}, 18
    s_lshl_b32 s61, s58, 13
    s_add_u32 s60, s60, s61
    s_lshl_b32 s61, s59, 12
    s_add_u32 s60, s60, s61
    s_add_u32 s60, s60, {O_OFF}
    v_and_b32 v7, 15, v0
    v_lshlrev_b32 v7, 4, v7
    v_bfe_u32 v8, v0, 4, 1
    v_lshl_add_u32 v7, v8, 10, v7
    v_lshrrev_b32 v8, 5, v0
    v_lshl_add_u32 v7, v8, 8, v7
    s_waitcnt lgkmcnt(8)
    v_add_f32 v14, v14, v12
    v_add_f32 v15, v15, v13
    v_rcp_f32 v12, v14
    v_rcp_f32 v13, v15''')
    for q_ in range(4):
        a, u = q_ >> 1, q_ & 1
        e(f's_waitcnt lgkmcnt({6 - 2*q_})')
        for r_ in range(8): e(f'v_add_f32 v{R+8*q_+r_}, v{R+8*q_+r_}, v{vO+8*q_+r_}')
        for r_ in range(8): e(f'v_mul_f32 v{R+8*q_+r_}, v{R+8*q_+r_}, v{12+a}')
        for r_ in range(4): e(f'v_cvt_pk_bf16_f32 v{vC+4*q_+r_}, v{R+8*q_+2*r_}, v{R+8*q_+2*r_+1}')
        e(f'buffer_store_dwordx4 {v(vC+4*q_,4)}, v7, {s(SWS,4)}, s60 offen offset:{a*2048 + u*512}{cfg.sc}')

UI = 131072
def phase3(e, cfg, vm):
    sA, sC, sK0 = 52, 53, 54
    vWD, vUD, vTB, vG, vY, vY2, vA, vW = 8, 12, 32, 16, 64, 96, 128, 160
    e(f'''s_and_b32 s{sA}, s{sXC}, 1
    s_lshl_b32 s{sA}, s{sA}, 3
    s_and_b32 s58, s{sXC}, 6
    s_add_u32 s{sA}, s{sA}, s58
    s_and_b32 s58, s{sR}, 1
    s_add_u32 s{sA}, s{sA}, s58
    s_lshr_b32 s{sC}, s{sR}, 1
    s_lshl_b32 s{sK0}, s{sC}, 1
    v_lshlrev_b32 v{vL16}, 4, v0
    v_lshrrev_b32 v1, 3, v0
    v_and_b32 v2, 7, v0
    v_lshrrev_b32 v5, 4, v0
    s_lshl_b32 s58, s{sC}, 7
    v_lshlrev_b32 v6, 1, v5
    v_xor_b32 v6, v2, v6
    v_lshlrev_b32 v6, 4, v6
    v_lshl_add_u32 v6, v1, 11, v6
    v_add_u32 v6, s58, v6''')
    for n in range(4): e(f'v_add_u32 v{vWD+n}, {n*8*2048 - n*1024}, v6')
    e(f'''v_and_b32 v6, 1, v5
    v_lshlrev_b32 v6, 1, v6
    v_xor_b32 v6, v2, v6
    v_lshlrev_b32 v6, 4, v6
    v_lshl_add_u32 v6, v1, 11, v6
    v_add_u32 v6, s58, v6
    v_xor_b32 v7, 64, v6''')
    for n in range(4): e(f'v_add_u32 v{vUD+n}, {n*8*2048 - n*1024}, v{6 + (n & 1)}')
    e(f'''s_lshr_b32 s59, s{sWV}, 1
    s_lshl_b32 s59, s59, 4
    s_add_u32 s59, s59, s{sA}
    s_and_b32 s60, s{sWV}, 1
    s_lshl_b32 s61, s60, 10
    s_add_u32 s61, s61, s59
    v_and_b32 v6, 15, v0
    v_lshlrev_b32 v6, 5, v6
    v_add_u32 v6, s61, v6
    v_lshlrev_b32 v7, 12, v6
    v_lshl_add_u32 v7, v5, 4, v7
    v_lshlrev_b32 v18, 2, v6
    v_lshlrev_b32 v19, 11, v6
    s_lshl_b32 s62, s59, 18
    s_lshl_b32 s63, s60, 17
    s_add_u32 s62, s62, s63
    s_add_u32 s62, s62, {U_OFF}
    s_add_u32 s63, s62, 65536
    s_lshl_b32 s64, s{sWV}, 13
    s_add_u32 s64, s64, {UI}
    s_mov_b32 s65, {512*4096}
    s_mov_b32 s66, {G_OFF}
    s_waitcnt lgkmcnt(0)''')
    for hf in range(2):
        e(f's_add_u32 m0, s64, {hf*4096}\ns_nop 0')
        for n in range(4):
            vm.issue('u'); e(f'buffer_load_dwordx4 v{vUD+n}, {s(SWS,4)}, s{62+hf} offen offset:{n*1024}{cfg.sc} lds')
    for tt in range(2):
        for pl in range(2):
            for kk in range(2):
                vm.issue('u'); e(f'buffer_load_dwordx4 {v(vTB+16*tt+8*pl+4*kk,4)}, v7, {s((SRE, SIM)[pl],4)}, {"s65" if tt else "0"} offen offset:{kk*64}')
        vm.issue('u'); e(f'buffer_load_dword v{vG+tt}, v18, {s(SWS,4)}, s66 offen offset:{tt*2048}{cfg.sc}')
    e(f's_add_u32 s67, s{sK0}, s{sWV}\ns_lshl_b32 s68, s{sWV}, 12')
    def wo_dma(q_):
        e(f's_add_u32 s69, s67, {4*q_}\ns_and_b32 s69, s69, 31\ns_add_u32 m0, s68, {q_*16384}\ns_lshl_b32 s69, s69, 16')
        for n in range(4):
            vm.issue(('w', q_)); e(f'buffer_load_dwordx4 v{vWD+n}, {s(SWO,4)}, s69 offen offset:{n*1024} lds')
    e(f'''s_lshl_b32 s70, s{sA}, 18
    s_lshl_b32 s71, s{sWV}, 11
    s_add_u32 s70, s70, s71
    s_add_u32 s70, s70, {O_OFF}
    s_mov_b32 s71, s{sK0}''')
    def o_ld(n):
        ops = [f's_lshl_b32 s72, s71, 13', f's_add_u32 s72, s72, s70', f's_add_u32 s71, s71, 1', f's_and_b32 s71, s71, 31']
        for tt in range(2):
            ops.append(('ld', ('o', n), f'buffer_load_dwordx4 {acc(8*n+4*tt,4)}, v{vL16}, {s(SWS,4)}, s72 offen offset:{tt*1024}{cfg.sc}'))
        return ops
    def emit(ops):
        for o in ops:
            if isinstance(o, tuple): vm.issue(o[1]); e(o[2])
            else: e(o)
    for q_ in range(2):
        wo_dma(q_)
        for n in range(4*q_, 4*q_+4): emit(o_ld(n))
    e(f'''v_bfe_u32 v6, v0, 3, 2
    v_lshlrev_b32 v6, 5, v6
    v_and_b32 v7, 3, v0
    v_lshl_add_u32 v6, v7, 3, v6
    v_bfe_u32 v7, v0, 2, 2
    v_lshl_add_u32 v6, v7, 7, v6
    v_lshl_add_u32 v20, v5, 10, v6
    v_and_b32 v7, 1, v5
    v_lshl_add_u32 v6, v7, 9, v6
    v_lshrrev_b32 v7, 5, v0
    v_lshl_add_u32 v24, v7, 11, v6''')
    for al in range(1, 4): e(f'v_xor_b32 v{20+al}, {32*al}, v20\nv_xor_b32 v{24+al}, {32*al}, v24')
    for al in range(4): e(f'v_add_u32 v{28+al}, 65536, v{24+al}')
    e(f'''s_lshr_b32 s73, s{sWV}, 1
    s_lshl_b32 s74, s73, 14
    s_add_u32 s74, s74, {UI}
    s_add_u32 s75, s74, 8192
    s_mov_b32 s76, {UI+16384}
    s_mov_b32 s77, {UI+24576}
    s_mov_b32 s78, 1.0
    s_mov_b32 s79, 0.5
    s_cmp_lg_u32 s{sA}, 0
    s_cbranch_scc1 L_fin_planes
    s_mov_b32 s78, 0.5
    s_cmp_eq_u32 s73, 0
    s_cbranch_scc1 L_fin_planes
    s_mov_b32 s74, {UI+24576}
    s_mov_b32 s75, {UI}
    s_mov_b32 s76, {UI+8192}
    s_mov_b32 s77, {UI+16384}
    s_mov_b32 s79, -0.5
    L_fin_planes:''')
    stamp(e, cfg, 1)
    e(f's_waitcnt vmcnt({vm.wait("u")})\ns_barrier')
    stamp(e, cfg, 2)
    def dft_pass(Y, s0):
        for pl in range(2):
            for al in range(4): e(f'v_add_u32 v{240+4*pl+al}, s{s0+pl}, v{20+al}')
        rd = []
        for st in range(4):
            pl, kk = st >> 1, st & 1
            for al in range(4):
                for u in range(2):
                    rd.append(f'ds_read_b64_tr_b16 {v(vW+16*st+4*al+2*u,2)}, v{240+4*pl+al} offset:{kk*4096 + u*512}')
        for x in rd[:12]: e(x)
        for fr in range(16):
            st, al = fr >> 2, fr & 3
            issued = min(32, 12 + 2*fr)
            e(f's_waitcnt lgkmcnt({issued - 2*(fr+1)})')
            for tt in range(2):
                d = Y + 16*tt + 4*al
                e(f'v_mfma_f32_16x16x32_bf16 {v(d,4)}, {v(vW+16*st+4*al,4)}, {v(vTB+16*tt+4*st,4)}, {"0" if st == 0 else v(d,4)}')
                if 12 + 2*fr + tt < 32: e(rd[12 + 2*fr + tt])
    dft_pass(vY, 74)
    e(f'''v_sub_f32 v6, 1.0, v{vG}
    v_sub_f32 v7, 1.0, v{vG+1}
    v_mul_f32 v1, s78, v6
    v_mul_f32 v2, s78, v7
    s_nop 3''')
    for r_ in range(32): e(f'v_mul_f32 v{vY+r_}, v{vY+r_}, v{1 + (r_ >> 4)}')
    e(f's_cmp_lg_u32 s{sA}, 0\ns_cbranch_scc1 L_fin_wo')
    dft_pass(vY2, 76)
    e('v_mul_f32 v1, s79, v6\nv_mul_f32 v2, s79, v7\ns_nop 5')
    for r_ in range(32): e(f'v_fmac_f32 v{vY+r_}, v{vY2+r_}, v{1 + (r_ >> 4)}')
    e('L_fin_wo:')
    stamp(e, cfg, 3)
    def wrd(n):
        b = 24 if n < 16 else 28
        return [f'ds_read_b64_tr_b16 {v(vW+16*(n & 1)+4*al+2*u,2)}, v{b+al} offset:{(n & 15)*4096 + u*1024}' for al in range(4) for u in range(2)]
    wo_dma(2)
    e(f's_waitcnt vmcnt({vm.wait(("w", 0))})\ns_barrier')
    for x in wrd(0): e(x)
    for n in range(32):
        if n % 4 == 3 and n < 31:
            q_ = (n + 1)//4
            if any(t == ('w', q_) for t in vm.q): e(f's_waitcnt vmcnt({vm.wait(("w", q_))})')
            e('s_barrier')
            if q_ + 2 < 8: wo_dma(q_ + 2)
        w_ = f'vmcnt({vm.wait(("o", n))}) ' if any(t == ('o', n) for t in vm.q) else ''
        e(f's_waitcnt {w_}lgkmcnt(0)')
        mf = []
        for al in range(4):
            for tt in range(2):
                d = vA + 16*tt + 4*al
                mf.append(f'v_mfma_f32_16x16x32_bf16 {v(d,4)}, {v(vW+16*(n & 1)+4*al,4)}, {acc(8*n+4*tt,4)}, {"0" if n == 0 else v(d,4)}')
        rd = wrd(n + 1) if n < 31 else []
        ol = o_ld(n + 8) if n + 8 < 32 else []
        for i, m_ in enumerate(mf):
            e(m_)
            if i < 4:
                for x in rd[2*i:2*i+2]: e(x)
            elif ol: emit(ol[[0, 2, 4, 5][i-4]:[2, 4, 5, 6][i-4]])
    stamp(e, cfg, 4)
    e(f'''s_lshl_b32 s58, s{sC}, 7
    s_add_u32 s59, s58, {512*2048}
    v_and_b32 v6, 1, v5
    v_lshl_add_u32 v19, v6, 5, v19
    v_lshrrev_b32 v6, 1, v5
    v_lshl_add_u32 v19, v6, 4, v19
    s_nop 1''')
    for tt in range(2):
        for r_ in range(16): e(f'v_fmac_f32 v{vY+16*tt+r_}, v{vA+16*tt+r_}, v{vG+tt}')
        P = vW + 8*tt
        for q_ in range(8): e(f'v_cvt_pk_bf16_f32 v{P+q_}, v{vY+16*tt+2*q_}, v{vY+16*tt+2*q_+1}')
        e('s_nop 1')
        for pr in range(2):
            e(f'v_permlane16_swap_b32 v{P+4*pr}, v{P+4*pr+2}\nv_permlane16_swap_b32 v{P+4*pr+1}, v{P+4*pr+3}')
        for pr in range(2):
            e(f'buffer_store_dwordx4 {v(P+4*pr,4)}, v19, {s(SOUT,4)}, s{58+tt} offen offset:{pr*64}')

def descriptor(name):
    return f'''.p2align 6
.amdhsa_kernel {name}
  .amdhsa_next_free_vgpr 512
  .amdhsa_next_free_sgpr 102
  .amdhsa_accum_offset 256
  .amdhsa_group_segment_fixed_size 0
  .amdhsa_kernarg_size 96
  .amdhsa_user_sgpr_count 2
  .amdhsa_user_sgpr_kernarg_segment_ptr 1
  .amdhsa_system_sgpr_workgroup_id_x 1
.end_amdhsa_kernel
'''

def build_multi(cfg):
    cfg.xch = 0
    ks = [('qkv_kernel', phase1, [SX, SW, SWS, SGW]), ('att_kernel', phase2, [SWS]), ('fin_kernel', phase3, [SWS, SWO, SRE, SIM, SOUT])]
    head = ''.join(f'; @launch kernel={n} grid=(256,1,1) block=(256,1,1) lds=163840\n' for n, _, _ in ks)
    out = head + '.amdgcn_target "amdgcn-amd-amdhsa--gfx950"\n.text\n'
    for kn, (n, ph, srds) in enumerate(ks):
        e = Asm(); vm = VM()
        e(f'.globl {n}\n.p2align 8\n.type {n},@function\n{n}:')
        stamp(e, cfg, 0)
        common_prologue(e, n, srds, f'L_exit_{n}-{n}')
        vm.issue('code')
        ph(e, cfg, vm)
        if cfg.stamps:
            e('s_waitcnt vmcnt(0)'); stamp(e, cfg, 5); stamp_store(e, cfg, kn, 6)
        e(f'L_exit_{n}:\ns_endpgm')
        assert not check(e.text())
        out += e.text()
    out += '.fill 64, 4, 0xbf810000\n.section .rodata,"a"\n' + ''.join(descriptor(n) for n, _, _ in ks)
    return out

if __name__ == '__main__':
    cfg = Cfg()
    for a in sys.argv[2:]:
        k, val = a.split('=')
        setattr(cfg, k, {'sc1': ' sc1'}.get(val, None) or int(val))
    open(sys.argv[1], 'w').write(build_multi(cfg))
```
